```python
import torch

def _softmax(x, axis=-1):
    return torch.softmax(x, dim=axis)

def _gelu(x):
    return torch.nn.functional.gelu(x, approximate='tanh')

def _silu(x):
    return torch.nn.functional.silu(x)

def _sigmoid(x):
    return torch.sigmoid(x)

def _layernorm(x, axis=-1, eps=1e-05):
    m = x.mean(dim=axis, keepdim=True)
    v = x.var(dim=axis, keepdim=True, unbiased=False)
    return (x - m) / torch.sqrt(v + eps)

def _scatter_add(tgt, idx, src, axis=0):
    return tgt.clone().index_add_(axis, idx, src)

def _segment_sum(src, seg, n):
    out = torch.zeros((n,) + src.shape[1:], dtype=src.dtype)
    return out.index_add_(0, seg, src)

def _pad(x, pw):
    flat = tuple((v for pair in reversed(pw) for v in pair))
    return torch.nn.functional.pad(x, flat)
kernel_name = 'adaLN_cond__grouped_kv_mqa__dense_activation_relu__prompt'

def setup_inputs():

    _w = lambda a: (lambda t: t.to(torch.bfloat16) if t.is_floating_point() else t)(torch.as_tensor(a))

    def _A_setup():
        B, S, D, H = (1, 2048, 1024, 32)
        Dh = D // H
        return {'x': _w((lambda *s: torch.randn(*s, dtype=torch.bfloat16) * 0.05)(B, S, D)), 'wq': _w((lambda *s: torch.randn(*s, dtype=torch.bfloat16) * 0.05)(D, H * Dh)), 'wk': _w((lambda *s: torch.randn(*s, dtype=torch.bfloat16) * 0.05)(D, Dh)), 'wv': _w((lambda *s: torch.randn(*s, dtype=torch.bfloat16) * 0.05)(D, Dh)), 'wo': _w((lambda *s: torch.randn(*s, dtype=torch.bfloat16) * 0.05)(H * Dh, D))}
    _A_in = _A_setup()

    def _B_setup():
        B, S, D, Dff = (1, 2048, 1024, 3584)
        return {'x': _w((lambda *s: torch.randn(*s, dtype=torch.bfloat16) * 0.05)(B, S, D)), 'w1': _w((lambda *s: torch.randn(*s, dtype=torch.bfloat16) * 0.05)(D, Dff)), 'w2': _w((lambda *s: torch.randn(*s, dtype=torch.bfloat16) * 0.05)(Dff, D))}
    _B_in = _B_setup()
    return {'A_x': _A_in['x'], 'A_wq': _A_in['wq'], 'A_wk': _A_in['wk'], 'A_wv': _A_in['wv'], 'A_wo': _A_in['wo'], 'B_x': _B_in['x'], 'B_w1': _B_in['w1'], 'B_w2': _B_in['w2'], 'c': _w((lambda *s: torch.randn(*s, dtype=torch.bfloat16) * 0.2)(1, 1024) * 8.0), 'w_mod': _w((lambda *s: torch.randn(*s, dtype=torch.bfloat16) * 0.2)(1024, 6 * 1024) * 1024 ** (-0.5) * 8.0)}

def reference(A_x, A_wq, A_wk, A_wv, A_wo, B_x, B_w1, B_w2, c, w_mod):

    def _A_ref(x, wq, wk, wv, wo):
        B, S, D = x.shape
        H = 32
        Dh = D // H
        q = (lambda x, *d: x.permute(*d))((x @ wq).reshape(B, S, H, Dh), 0, 2, 1, 3)
        k = x @ wk
        v = x @ wv
        scores = torch.einsum('bhqd,bkd->bhqk', q, k) * Dh ** (-0.5)
        p = _softmax(scores, axis=-1)
        o = torch.einsum('bhqk,bkd->bhqd', p, v)
        return (lambda x, *d: x.permute(*d))(o, 0, 2, 1, 3).reshape(B, S, H * Dh) @ wo

    def _B_ref(x, w1, w2):
        h = torch.einsum('bsd,df->bsf', x, w1)
        zero = torch.zeros_like(h)
        h = torch.maximum(h, zero)
        return torch.einsum('bsf,fd->bsd', h, w2)
    x = A_x
    mod = (_silu(c) @ w_mod).reshape(c.shape[0], 6, 1, -1)
    sa, ca, ga, sb, cb, gb = (mod[:, 0].clone(), mod[:, 1].clone(), mod[:, 2].clone(), mod[:, 3].clone(), mod[:, 4].clone(), mod[:, 5].clone())
    h = _layernorm(x, axis=-1) * (1 + ca) + sa
    x = x + ga * _A_ref(h, A_wq, A_wk, A_wv, A_wo)
    h = _layernorm(x, axis=-1) * (1 + cb) + sb
    x = x + gb * _B_ref(h, B_w1, B_w2)
    return x
```

```python
import re

class Kern:
    def __init__(self, name, vgpr=256, agpr=0, sgpr=102, wg_y=False):
        self.name = name; self.lines = []; self.vgpr = vgpr; self.agpr = agpr; self.sgpr = sgpr
        self._uid = 0
    def __call__(self, s):
        for l in s.split("\n"):
            l = l.strip()
            if l: self.lines.append(l)
    def c(self, s): self.lines.append("; " + s)
    def label(self, n): self.lines.append(f"{n}:")
    def L(self, base):
        return f"L{self.name}_{base}"
    def nop(self, n):
        while n > 0:
            m = min(n, 16); self(f"s_nop {m-1}"); n -= m
    def text(self):
        out = [f".globl {self.name}", ".p2align 8", f".type {self.name},@function", f"{self.name}:"]
        for l in self.lines:
            out.append(l if l.endswith(":") else "    " + l)
        return "\n".join(out)
    def desc(self):
        acc = (self.vgpr + 3) // 4 * 4
        nfv = acc + self.agpr if self.agpr else self.vgpr
        return f""".p2align 6
.amdhsa_kernel {self.name}
  .amdhsa_next_free_vgpr {nfv}
  .amdhsa_next_free_sgpr {self.sgpr}
  .amdhsa_accum_offset {acc}
  .amdhsa_group_segment_fixed_size 0
  .amdhsa_kernarg_size 104
  .amdhsa_user_sgpr_count 2
  .amdhsa_user_sgpr_kernarg_segment_ptr 1
  .amdhsa_system_sgpr_workgroup_id_x 1
.end_amdhsa_kernel"""

def vr(a, n=1, f="v"):
    return f"{f}{a}" if n == 1 else f"{f}[{a}:{a+n-1}]"
def ar(a, n=1): return vr(a, n, "a")
def sr(a, n=1): return vr(a, n, "s")

_REG = re.compile(r"^[-|]*(?:abs\()?([vas])(?:(\d+)|\[(\d+):(\d+)\])\)?\|?$")
TRANS = ("v_exp_f32", "v_log_f32", "v_rcp_f32", "v_rsq_f32", "v_sqrt_f32", "v_sin_f32", "v_cos_f32", "v_rcp_iflag_f32", "v_exp_f16")
def regs_of(op):
    op = op.strip()
    if op in ("vcc",): return {("s", 106), ("s", 107)}
    if op == "vcc_lo": return {("s", 106)}
    if op == "vcc_hi": return {("s", 107)}
    if op == "exec": return {("s", 126), ("s", 127)}
    if op == "exec_lo": return {("s", 126)}
    if op == "exec_hi": return {("s", 127)}
    if op == "m0": return {("s", 124)}
    m = _REG.match(op)
    if not m: return set()
    f = m.group(1)
    if m.group(2) is not None: return {(f, int(m.group(2)))}
    return {(f, i) for i in range(int(m.group(3)), int(m.group(4)) + 1)}

class Ins:
    def __init__(self, text, idx):
        self.text = text; self.idx = idx
        t = text.split(";")[0].strip()
        p = t.split(None, 1)
        self.op = p[0]
        for suf in ("_e32", "_e64", "_dpp", "_sdwa"):
            if self.op.endswith(suf): self.op = self.op[: -len(suf)]
        rest = p[1] if len(p) > 1 else ""
        ops = [o.strip() for o in rest.split(",")] if rest else []
        mods = ""
        if ops:
            fixed = []; depth = 0; cur = ""
            for ch in rest:
                if ch == "[": depth += 1
                if ch == "]": depth -= 1
                if ch == "," and depth == 0: fixed.append(cur.strip()); cur = ""
                else: cur += ch
            fixed.append(cur.strip()); ops = fixed
            lastp = ops[-1].split(None, 1)
            ops[-1] = lastp[0]
            mods = lastp[1] if len(lastp) > 1 else ""
        self.ops = ops; self.mods = mods
        op = self.op
        self.is_mfma = op.startswith("v_mfma") or op.startswith("v_smfmac")
        self.is_valu = op.startswith("v_") and not self.is_mfma
        self.is_trans = op in TRANS
        self.is_vmem = op.startswith(("buffer_", "global_", "flat_")) and op not in ("buffer_inv", "buffer_wbl2")
        self.is_ds = op.startswith("ds_")
        self.is_smem = op.startswith(("s_load", "s_buffer_load", "s_memtime", "s_memrealtime", "s_atomic"))
        self.is_salu = op.startswith("s_") and not self.is_smem
        self.is_dpp = any(k in mods for k in ("row_", "quad_perm", "wave_")) or "_dpp" in p[0]
        self.is_lds_dma = self.is_vmem and (re.search(r"\blds\b", mods) is not None or "load_lds" in op)
        R = [regs_of(o) for o in ops]
        dst = set(); src = set()
        self.passes = 0
        if self.is_mfma:
            dst = R[0]; self.A = R[1]; self.B = R[2]; self.C = R[3]; src = R[1] | R[2] | R[3]
            self.passes = 8 if "32x32" in op else 4
        elif self.is_valu:
            if op.startswith("v_permlane") and "swap" in op:
                dst = R[0] | R[1]; src = R[0] | R[1]
            elif op in ("v_add_co_u32", "v_sub_co_u32", "v_addc_co_u32", "v_subb_co_u32", "v_subrev_co_u32", "v_mad_u64_u32", "v_div_scale_f32"):
                dst = R[0] | R[1]; src = set().union(*R[2:])
            elif op == "v_nop": pass
            else:
                dst = R[0]; src = set().union(*R[1:]) if len(R) > 1 else set()
                if op.startswith(("v_fmac", "v_dot2c", "v_writelane")) or self.is_dpp or "UNUSED_PRESERVE" in mods: src |= R[0]
                if op.startswith("v_cmpx"): dst |= regs_of("exec")
                if op == "v_div_fmas_f32": src |= regs_of("vcc")
        elif self.is_vmem:
            if "store" in op or ("atomic" in op and "sc0" not in mods):
                src = set().union(*R)
            elif "atomic" in op:
                src = set().union(*R); dst = R[0]
            elif self.is_lds_dma:
                src = set().union(*R) | regs_of("m0")
            else:
                dst = R[0]; src = set().union(*R[1:])
        elif self.is_ds:
            if op.startswith(("ds_read", "ds_bpermute", "ds_permute", "ds_swizzle")) or "_rtn" in op:
                dst = R[0]; src = set().union(*R[1:])
            else: src = set().union(*R)
        elif self.is_smem:
            dst = R[0]; src = set().union(*R[1:]) if len(R) > 1 else set()
            if op.startswith("s_atomic"): src |= R[0]
        else:
            if op.startswith(("s_cmp", "s_bitcmp", "s_cbranch", "s_branch", "s_barrier", "s_waitcnt", "s_nop", "s_endpgm", "s_setprio", "s_sleep", "buffer_inv", "buffer_wbl2", "s_setreg")):
                src = set().union(*R) if R else set()
                if op in ("s_cbranch_vccz", "s_cbranch_vccnz"): src |= regs_of("vcc")
                if op in ("s_cbranch_execz", "s_cbranch_execnz"): src |= regs_of("exec")
            else:
                dst = R[0]; src = set().union(*R[1:]) if len(R) > 1 else set()
                if "saveexec" in op: dst |= regs_of("exec"); src |= regs_of("exec")
                if op in ("s_addk_i32", "s_mulk_i32"): src |= R[0]
        self.dst = dst; self.src = src
        self.states = 1
        if op == "s_nop": self.states = int(ops[0], 0) + 1
        self.wide_store = self.is_vmem and "store" in op and (op.endswith("x4") or op.endswith("x3"))
        if self.wide_store:
            self.data = R[0] if op.startswith("buffer") else R[1]

def isv(r): return r[0] in "va"

def need(p, c):
    n = 0; why = ""
    def up(k, w):
        nonlocal n, why
        if k > n: n = k; why = w
    pv = {r for r in p.dst if isv(r)}; ps = {r for r in p.dst if r[0] == "s"}
    if p.is_valu:
        if c.is_mfma and pv & c.src: up(2, "VALU->MFMA")
        if p.is_trans and c.is_valu and not c.is_trans and pv & c.src: up(1, "trans->VALU")
        if c.is_valu and c.op.startswith("v_permlane") and pv & c.src: up(2, "VALU->permlane")
        if c.is_valu and c.is_dpp and pv & c.src: up(2, "VALU->DPP")
        if c.op in ("v_readlane_b32", "v_readfirstlane_b32") and pv & c.src: up(1, "VALU->readlane")
        if ps:
            if c.is_valu and ps & c.src: up(4 if c.op in ("v_readlane_b32", "v_writelane_b32", "v_div_fmas_f32") else 2, "VALU sgpr->VALU")
            if c.is_vmem and ps & c.src: up(5, "VALU sgpr->VMEM")
            if c.is_salu and ps & c.src and not c.op.startswith("s_cbranch_vcc"): up(1, "VALU sgpr->SALU (pad)")
            if ("s", 126) in ps and (c.is_mfma): up(4, "VALU exec->MFMA")
            if ("s", 126) in ps and c.is_dpp: up(5, "VALU exec->DPP")
        if ("dst_sel:WORD" in p.mods or "dst_sel:BYTE" in p.mods) and c.is_valu and pv & (c.src | c.dst): up(1, "SDWA dst->VALU")
    if p.is_mfma:
        D = p.dst; big = p.passes == 8
        if c.is_mfma:
            if D & (c.A | c.B): up(12 if big else 8, "MFMA D->MFMA A/B")
            if D & c.C:
                if not (D == c.C and p.passes == c.passes): up(10 if big else 6, "MFMA D->MFMA C overlap")
            elif D & c.dst: up(10 if big else 6, "MFMA D->MFMA D WAW (conservative)")
        elif c.is_valu and D & (c.src | c.dst): up(12 if big else 8, "MFMA D->VALU")
        elif (c.is_vmem or c.is_ds) and D & (c.src | c.dst): up(12 if big else 8, "MFMA D->VMEM/DS")
        if (c.is_valu) and p.C & c.dst: up(7 if big else 3, "MFMA C read->VALU write")
        if (c.is_ds or c.is_vmem) and (p.C & c.dst) and not (p.C == p.dst): up(7 if big else 3, "MFMA C read->load write (conservative)")
    if p.is_salu and ("s", 124) in p.dst and c.is_lds_dma: up(1, "M0->LDS DMA")
    if p.wide_store and p.data & c.dst: up(2 if c.is_valu else 1, "wide store data WAR")
    return n, why

def check(lines, name="", loop_iters=2, maxpaths=64, verbose=False):
    prog = []; labels = {}
    for l in lines:
        t = l.split(";")[0].strip()
        if not t: continue
        if t.endswith(":"): labels[t[:-1]] = len(prog); continue
        if t.startswith("."): continue
        prog.append(Ins(t, len(prog)))
    errs = set(); npaths = [0]
    def run(pc, hist, vmq, lgq, taken, depth):
        hist = list(hist); vmq = list(vmq); lgq = list(lgq); taken = dict(taken)
        while pc < len(prog):
            c = prog[pc]
            dist = 0
            for p in reversed(hist):
                k, why = need(p, c)
                if k > dist: errs.add(f"{name}: HAZARD {why}: need {k} have {dist}: [{p.idx}] {p.text}  ->  [{c.idx}] {c.text}")
                dist += p.states
                if dist >= 20: break
            touch = c.src | c.dst
            for q, nm in ((vmq, "vmcnt"), (lgq, "lgkmcnt")):
                for o in q:
                    if o.dst & touch and not (c.op.startswith("s_waitcnt")):
                        errs.add(f"{name}: UNWAITED {nm}: [{o.idx}] {o.text}  touched by [{c.idx}] {c.text}")
            if c.op == "s_waitcnt":
                m = re.search(r"vmcnt\((\d+)\)", c.text)
                if m:
                    n = int(m.group(1))
                    while len(vmq) > n: vmq.pop(0)
                m = re.search(r"lgkmcnt\((\d+)\)", c.text)
                if m:
                    n = int(m.group(1))
                    if any(o.is_smem for o in lgq):
                        if n == 0: lgq = []
                    else:
                        while len(lgq) > n: lgq.pop(0)
            if c.is_vmem:
                vmq.append(c)
                if len(vmq) > 63: errs.add(f"{name}: vmcnt overflow >63 at [{c.idx}] {c.text}")
            if c.is_ds or c.is_smem:
                lgq.append(c)
            hist.append(c)
            if len(hist) > 24: hist.pop(0)
            if c.op == "s_endpgm": npaths[0] += 1; return
            if c.op == "s_branch":
                pc = labels[c.ops[0]]; continue
            if c.op.startswith("s_cbranch"):
                tgt = labels[c.ops[0]]
                if tgt <= pc:
                    k = taken.get(pc, 0)
                    if k < loop_iters - 1:
                        taken[pc] = k + 1; pc = tgt; continue
                    taken[pc] = 0
                else:
                    if npaths[0] < maxpaths: run(tgt, hist, vmq, lgq, taken, depth + 1)
            pc += 1
        errs.add(f"{name}: path runs off the end")
    run(0, [], [], [], {}, 0)
    return sorted(errs), npaths[0]
```

```python
from gen_core import *

MOFF = 24.0
def k3_attn(opts):
    k = Kern("k3_kernel", vgpr=216, sgpr=72)
    vm = VM(k)
    done = k.L("done"); helper = k.L("helper"); join = k.L("join")
    LDS_KV = 65536; LDS_Q = 131072
    Q = 192; NEGM = 200; S = [16, 32]; P = 48; L = 56; ONES = 60; O = 64; K0, K1, V0, V1 = 80, 84, 88, 92
    k("s_cmp_ge_u32 s2, 256")
    k(f"s_cbranch_scc1 {done}")
    k(f"s_load_dwordx2 s[4:5], s[0:1], {KA_WQ}")
    k(f"s_load_dwordx2 s[6:7], s[0:1], {KA_WS}")
    k("v_lshrrev_b32 v6, 6, v0")
    k("v_and_b32 v7, 63, v0")
    k("v_readfirstlane_b32 s20, v6")
    k("v_lshlrev_b32 v1, 4, v7")
    tile_map_4x8(k, 21, 22, 23)
    k("s_and_b32 s18, s20, 3")
    k("s_lshl_b32 s19, s21, 2")
    k("s_add_u32 s19, s19, s18")
    core = Core64(k, vm, 16, 7, 2048, False, acc=16, wf=48, ring=64)
    k("s_waitcnt lgkmcnt(0)")
    srd(k, 32, 6, SZ_KV, WS_KV)
    srd(k, 36, 6, SZ_ACT, WS_OF)
    k("s_cmp_ge_u32 s20, 4")
    k(f"s_cbranch_scc1 {helper}")
    srd(k, 24, 6, SZ_ACT, WS_H1F)
    k("s_lshl_b32 s60, s19, 16")
    core.prologue(dma=False)
    core.setup_tr(7, 8, 9)
    core.first()
    for s in range(16): core.stage(s, dma=False, zero_init=True)
    k.nop(12)
    c = fhex(LOG2E / 32**0.5)
    for r in range(32): k(f"v_mul_f32 v{16+r}, {c}, v{16+r}")
    for r in range(8): k(f"v_cvt_pk_bf16_f32 v{Q+r}, v{16+2*r}, v{17+2*r}")
    for r in range(8): k(f"v_cvt_pk_bf16_f32 v{48+r}, v{32+2*r}, v{33+2*r}")
    k("s_lshl_b32 s23, s18, 11")
    k(f"s_add_u32 s23, s23, {LDS_Q}")
    k("v_add_u32 v8, s23, v1")
    k("ds_write_b128 v8, v[48:51]")
    k("ds_write_b128 v8, v[52:55] offset:1024")
    k("s_waitcnt lgkmcnt(0)")
    k("s_barrier")
    k(f"s_branch {join}")
    k.label(helper)
    vm.q = []
    srd(k, 28, 4, 1024*1024*2)
    srd(k, 40, 6, SZ_MODP, WS_MODP)
    srd(k, 44, 6, SZ_MODF, WS_MODF)
    srd(k, 48, 6, SZ_UTP, WS_UTP)
    srd(k, 52, 6, SZ_UTF, WS_UTF)
    k("v_and_b32 v10, 255, v0")
    k("v_lshlrev_b32 v10, 2, v10")
    k("s_cmp_lt_u32 s2, 12")
    k("s_cselect_b32 s23, 0, 0x40000000")
    k("v_add_u32 v11, s23, v10")
    k("s_lshr_b32 s56, s2, 2")
    k("s_lshl_b32 s57, s56, 13")
    k("s_add_u32 s57, s57, 8192")
    k("s_cmp_eq_u32 s56, 2")
    k("s_cselect_b32 s58, 4096, 0")
    k("s_sub_u32 s57, s57, s58")
    k("s_and_b32 s58, s2, 3")
    k("s_lshl_b32 s58, s58, 10")
    k("s_add_u32 s57, s57, s58")
    for sp in range(4):
        vm.issue(f"buffer_load_dword v{16+sp}, v11, s[40:43], s57 offen", "job")
        if sp < 3: k("s_add_u32 s57, s57, 24576")
    k("s_sub_u32 s57, s2, 12")
    k("s_cmp_lt_u32 s57, 14")
    k("s_cselect_b32 s23, 0, 0x40000000")
    k("s_cselect_b32 s57, s57, 0")
    k("v_add_u32 v12, s23, v10")
    k("s_lshl_b32 s58, s57, 10")
    for sp in range(4):
        for vec in range(2):
            k(f"s_add_u32 s59, s58, {sp*28672+vec*14336}")
            vm.issue(f"buffer_load_dword v{20+sp*2+vec}, v12, s[48:51], s59 offen", "job")
    core.setup_dma(7, 8, 9, 23)
    k("s_lshl_b32 s61, s22, 7")
    k("s_lshl_b32 s62, s18, 15")
    k("s_add_u32 s61, s61, s62")
    k("s_lshl_b32 s62, s18, 11")
    core.prologue(act=False)
    k("s_lshl_b32 s63, s18, 12")
    for j in range(3):
        k(f"s_add_u32 s59, s63, {j*16384}")
        k(f"s_add_u32 m0, s59, {LDS_KV}")
        k.nop(1)
        for i in range(4):
            vm.issue(f"buffer_load_dwordx4 v1, s[32:35], s59 offen offset:{i*1024} lds", "kv")
    vm.wait([("w", 0)])
    k("s_barrier")
    k("v_add_f32 v16, v16, v17")
    k("v_add_f32 v18, v18, v19")
    k("v_add_f32 v16, v16, v18")
    round1(k, 16)
    k("s_cmp_eq_u32 s56, 1")
    k("s_cselect_b32 s59, 1.0, 0")
    k("v_add_f32 v16, s59, v16")
    round1(k, 16)
    k("s_lshl_b32 s59, s2, 10")
    vm.issue("buffer_store_dword v16, v11, s[44:47], s59 offen", "st")
    for vec in range(2):
        a = 20 + vec
        k(f"v_add_f32 v{a}, v{a}, v{a+2}")
        k(f"v_add_f32 v{a+4}, v{a+4}, v{a+6}")
        k(f"v_add_f32 v{a}, v{a}, v{a+4}")
        k(f"v_mov_b32 v{28+vec}, v{a}")
        round1(k, 28+vec)
        k(f"v_sub_f32 v{a}, v{a}, v{28+vec}")
        k(f"v_cvt_pk_bf16_f32 v{28+vec}, v{28+vec}, v{a}")
    k("v_mov_b32 v30, 0")
    k("v_mov_b32 v31, 0")
    k("v_lshlrev_b32 v13, 2, v10")
    k("v_add_u32 v13, s23, v13") if False else None
    k("v_sub_u32 v14, v12, v10")
    k("v_add_u32 v13, v13, v14")
    k("s_lshl_b32 s59, s57, 12")
    vm.issue("buffer_store_dwordx4 v[28:31], v13, s[52:55], s59 offen", "st")
    for s in range(16): core.helper_stage(s)
    vm.wait_all()
    k("s_barrier")
    k("s_lshl_b32 s23, s18, 11")
    k(f"s_add_u32 s23, s23, {LDS_Q}")
    k("v_add_u32 v8, s23, v1")
    k(f"ds_read_b128 {vr(Q,4)}, v8")
    k(f"ds_read_b128 {vr(Q+4,4)}, v8 offset:1024")
    k.label(join)
    vm.q = []
    k(f"v_add_u32 v6, {LDS_KV}, v1")
    k(f"ds_read_b128 {vr(K0,4)}, v6")
    k(f"ds_read_b128 {vr(K1,4)}, v6 offset:1024")
    k("v_lshrrev_b32 v8, 4, v7")
    k("v_xor_b32 v8, v8, v7")
    k("v_and_b32 v8, 1, v8")
    k("v_cmp_eq_u32 vcc, 0, v8")
    k("v_mov_b32 v9, 0x3f803f80")
    k.nop(1)
    for r in range(4): k(f"v_cndmask_b32 v{ONES+r}, 0, v9, vcc")
    for r in range(16): k(f"v_mov_b32 v{O+r}, 0")
    for r in range(4): k(f"v_mov_b32 v{L+r}, 0")
    for r in range(8): k(f"v_mov_b32 v{P+r}, 0")
    k("s_lshl_b32 s63, s20, 11")
    k(f"s_add_u32 s64, s63, {LDS_KV}")
    k(f"s_add_u32 s63, s63, {3*16384}")
    k("s_waitcnt lgkmcnt(0)")
    def qk(dst, cin):
        k(f"v_mfma_f32_32x32x16_bf16 {vr(dst,16)}, {vr(K0,4)}, {vr(Q,4)}, {cin}")
        k(f"v_mfma_f32_32x32x16_bf16 {vr(dst,16)}, {vr(K1,4)}, {vr(Q+4,4)}, {vr(dst,16)}")
    def rowmax(src, dst):
        k(f"v_max3_f32 v{dst}, v{src}, v{src+1}, v{src+2}")
        for r in range(3, 15, 2): k(f"v_max3_f32 v{dst}, v{dst}, v{src+r}, v{src+r+1}")
        k(f"v_max_f32 v{dst}, v{dst}, v{src+15}")
    def make_negm(src, off):
        k(f"v_mov_b32 v9, v{src}")
        k.nop(2)
        k(f"v_permlane32_swap_b32 v{src}, v9")
        k.nop(1)
        k(f"v_max_f32 v{src}, v{src}, v9")
        k(f"v_sub_f32 v{NEGM}, {fhex(-off) if off else 0}, v{src}")
        for r in range(1, 16): k(f"v_mov_b32 v{NEGM+r}, v{NEGM}")
        k.nop(2)
    qk(S[1], "0")
    k.nop(12)
    rowmax(S[1], 8)
    make_negm(8, opts.get("moff", MOFF))
    qk(S[0], vr(NEGM, 16))
    k(f"ds_read_b128 {vr(K0,4)}, v6 offset:4096")
    k(f"ds_read_b128 {vr(V1,4)}, v6 offset:3072")
    k(f"ds_read_b128 {vr(K1,4)}, v6 offset:{4096+1024}")
    k(f"ds_read_b128 {vr(V0,4)}, v6 offset:2048")
    k.nop(8)
    def tile(t):
        s = S[t & 1]; sn = S[(t+1) & 1]
        e = lambda j: k(f"v_exp_f32 v{s+j}, v{s+j}")
        c_ = lambda j: k(f"v_cvt_pk_bf16_f32 v{P+j//2}, v{s+j}, v{s+j+1}")
        off = lambda tt: (tt % 16)*4096
        k("s_waitcnt lgkmcnt(3)")
        k(f"v_mfma_f32_32x32x16_bf16 {vr(sn,16)}, {vr(K0,4)}, {vr(Q,4)}, {vr(NEGM,16)}")
        k(f"ds_read_b128 {vr(K0,4)}, v6 offset:{off(t+2)}")
        e(0); e(1); e(2); e(3)
        k("s_waitcnt lgkmcnt(3)")
        k(f"v_mfma_f32_32x32x16_bf16 {vr(O,16)}, {vr(V1,4)}, {vr(P+4,4)}, {vr(O,16)}")
        k(f"ds_read_b128 {vr(V1,4)}, v6 offset:{off(t)+3072}")
        if t % 4 == 0:
            J = t // 4
            k("s_waitcnt vmcnt(2)")
            k("s_barrier")
            k(f"s_add_u32 m0, s64, {((J+3) % 4)*16384}")
        c_(0); c_(2); e(4); e(5)
        if t % 4 == 0:
            k("buffer_load_dwordx4 v1, s[32:35], s63 offen lds")
            k("buffer_load_dwordx4 v1, s[32:35], s63 offen offset:1024 lds")
            k("s_add_u32 s63, s63, 16384")
        k("s_waitcnt lgkmcnt(3)")
        k(f"v_mfma_f32_32x32x16_bf16 {vr(sn,16)}, {vr(K1,4)}, {vr(Q+4,4)}, {vr(sn,16)}")
        k(f"ds_read_b128 {vr(K1,4)}, v6 offset:{off(t+2)+1024}")
        e(6); e(7); c_(4); c_(6)
        k(f"v_mfma_f32_16x16x32_bf16 {vr(L,4)}, {vr(ONES,4)}, {vr(P+4,4)}, {vr(L,4)}")
        e(8); e(9); e(10); e(11)
        k("s_waitcnt lgkmcnt(3)")
        k(f"v_mfma_f32_32x32x16_bf16 {vr(O,16)}, {vr(V0,4)}, {vr(P,4)}, {vr(O,16)}")
        k(f"ds_read_b128 {vr(V0,4)}, v6 offset:{off(t+1)+2048}")
        c_(8); c_(10); e(12); e(13)
        k(f"v_mfma_f32_16x16x32_bf16 {vr(L,4)}, {vr(ONES,4)}, {vr(P,4)}, {vr(L,4)}")
        e(14); e(15); c_(12); c_(14)
    emit_loop(k, vm, lambda i: [tile(16*i + t) for t in range(16)], 4, 65, "att")
    k("s_waitcnt lgkmcnt(0)")
    k(f"v_mfma_f32_32x32x16_bf16 {vr(O,16)}, {vr(V1,4)}, {vr(P+4,4)}, {vr(O,16)}")
    k(f"v_mfma_f32_16x16x32_bf16 {vr(L,4)}, {vr(ONES,4)}, {vr(P+4,4)}, {vr(L,4)}")
    epi = k.L("epi"); slow = k.L("slow")
    k("v_and_b32 v8, 16, v7")
    k("v_cmp_eq_u32 s[66:67], 0, v8")
    k("v_mov_b32 v10, 0")
    k.nop(10)
    k(f"v_cndmask_b32 v9, v{L+1}, v{L}, s[66:67]")
    k("v_mov_b32 v8, v9")
    for r in range(16): k(f"v_fmac_f32 v8, v{O+r}, v10")
    k(f"v_cmp_ngt_f32 vcc, {fhex(2.0**110)}, v8")
    k.nop(5)
    k(f"s_cbranch_vccnz {slow}")
    k.label(epi)
    k("v_rcp_f32 v9, v9")
    k("s_lshl_b32 s23, s19, 16")
    k("s_lshl_b32 s56, s22, 12")
    k("s_add_u32 s23, s23, s56")
    k("s_lshr_b32 s56, s20, 2")
    k("s_lshl_b32 s56, s56, 11")
    k("s_add_u32 s23, s23, s56")
    for r in range(16): k(f"v_mul_f32 v{O+r}, v{O+r}, v9")
    for r in range(8): k(f"v_cvt_pk_bf16_f32 v{P+r}, v{O+2*r}, v{O+2*r+1}")
    k(f"buffer_store_dwordx4 {vr(P,4)}, v1, s[36:39], s23 offen")
    k(f"buffer_store_dwordx4 {vr(P+4,4)}, v1, s[36:39], s23 offen offset:1024")
    k("s_endpgm")
    k.label(slow)
    k("s_waitcnt vmcnt(0)")
    k("v_mov_b32 v8, 0xff7fffff")
    k("s_mov_b32 s56, 0")
    l1 = k.L("slow1"); l2 = k.L("slow2")
    k.label(l1)
    k(f"buffer_load_dwordx4 {vr(K0,4)}, v1, s[32:35], s56 offen")
    k(f"buffer_load_dwordx4 {vr(K1,4)}, v1, s[32:35], s56 offen offset:1024")
    k("s_waitcnt vmcnt(0)")
    qk(S[0], "0")
    k.nop(12)
    rowmax(S[0], 11)
    k("v_max_f32 v8, v8, v11")
    k("s_add_u32 s56, s56, 4096")
    k(f"s_cmp_lt_u32 s56, {64*4096}")
    k(f"s_cbranch_scc1 {l1}")
    k.nop(8)
    make_negm(8, 0)
    for r in range(16): k(f"v_mov_b32 v{O+r}, 0")
    for r in range(4): k(f"v_mov_b32 v{L+r}, 0")
    k("s_mov_b32 s56, 0")
    k.label(l2)
    for i, r in enumerate((K0, K1, V0, V1)):
        k(f"buffer_load_dwordx4 {vr(r,4)}, v1, s[32:35], s56 offen offset:{i*1024}")
    k("s_waitcnt vmcnt(0)")
    qk(S[0], vr(NEGM, 16))
    k.nop(12)
    for j in range(16): k(f"v_exp_f32 v{S[0]+j}, v{S[0]+j}")
    k.nop(1)
    for j in range(8): k(f"v_cvt_pk_bf16_f32 v{P+j}, v{S[0]+2*j}, v{S[0]+2*j+1}")
    k.nop(2)
    k(f"v_mfma_f32_32x32x16_bf16 {vr(O,16)}, {vr(V0,4)}, {vr(P,4)}, {vr(O,16)}")
    k(f"v_mfma_f32_32x32x16_bf16 {vr(O,16)}, {vr(V1,4)}, {vr(P+4,4)}, {vr(O,16)}")
    k(f"v_mfma_f32_16x16x32_bf16 {vr(L,4)}, {vr(ONES,4)}, {vr(P,4)}, {vr(L,4)}")
    k(f"v_mfma_f32_16x16x32_bf16 {vr(L,4)}, {vr(ONES,4)}, {vr(P+4,4)}, {vr(L,4)}")
    k("s_add_u32 s56, s56, 4096")
    k(f"s_cmp_lt_u32 s56, {64*4096}")
    k(f"s_cbranch_scc1 {l2}")
    k.nop(12)
    k(f"v_cndmask_b32 v9, v{L+1}, v{L}, s[66:67]")
    if opts.get("dbgslow"):
        k(f"s_load_dwordx2 s[56:57], s[0:1], {KA_DBG}")
        k("s_waitcnt lgkmcnt(0)")
        srd(k, 40, 56, 256)
        k("v_mov_b32 v11, 1")
        k("v_mov_b32 v12, 0")
        k("buffer_atomic_add v11, v12, s[40:43], 0 offen")
    k(f"s_branch {epi}")
    k.label(done)
    k("s_endpgm")
    return k, dict(grid=256, block=512, lds=LDS_Q + 8192)
```

```python
from asmlib import *

KA_X, KA_WQ, KA_WK, KA_WV, KA_WO, KA_BX, KA_W1, KA_W2, KA_C, KA_WMOD, KA_OUT, KA_DBG, KA_WS = [8*i for i in range(13)]
WS_MODP, SZ_MODP = 0x000000, 4*6144*4
WS_MODF, SZ_MODF = 0x018000, 3*1024*4
WS_UTP,  SZ_UTP  = 0x020000, 4*2*3584*4
WS_UTF,  SZ_UTF  = 0x040000, 3584*16
WS_RSTD, SZ_RSTD = 0x050000, 2048*4
WS_STATS,SZ_STATS= 0x060000, 2048*16*8
WS_KV,   SZ_KV   = 0x0C0000, 64*4096
WS_H1F,  SZ_ACT  = 0x100000, 2048*1024*2
WS_OF            = 0x500000
WS_X2P           = 0x900000
WS_X2SF          = 0xD00000
WS_HF,   SZ_HF   = 0x1100000, 2048*3584*2
LOG2E = 1.4426950408889634

import struct
def f2u(x): return struct.unpack("<I", struct.pack("<f", x))[0]
def fhex(x): return hex(f2u(x))

def srd(k, d, lo, size, off=0):
    if off:
        k(f"s_add_u32 s{d}, s{lo}, {hex(off)}")
        k(f"s_addc_u32 s{d+1}, s{lo+1}, 0")
    else:
        k(f"s_mov_b32 s{d}, s{lo}")
        k(f"s_mov_b32 s{d+1}, s{lo+1}")
    k(f"s_mov_b32 s{d+2}, {hex(size)}")
    k(f"s_mov_b32 s{d+3}, 0x20000")

def unpack2(k, lo, hi, src):
    k(f"v_lshlrev_b32 v{lo}, 16, v{src}")
    k(f"v_and_b32 v{hi}, 0xffff0000, v{src}")

def round2(k, a, b):
    k(f"v_cvt_pk_bf16_f32 v{b}, v{a}, v{b}")
    unpack2(k, a, b, b)

def round1(k, a):
    k(f"v_cvt_pk_bf16_f32 v{a}, v{a}, v{a}")
    k(f"v_and_b32 v{a}, 0xffff0000, v{a}")

def sum_halves(k, a, t):
    k(f"v_mov_b32 v{t}, v{a}")
    k.nop(2)
    k(f"v_permlane32_swap_b32 v{a}, v{t}")
    k.nop(1)
    k(f"v_add_f32 v{a}, v{a}, v{t}")

def sum_rows16(k, a, t):
    k(f"v_mov_b32 v{t}, v{a}")
    k.nop(2)
    k(f"v_permlane16_swap_b32 v{a}, v{t}")
    k.nop(1)
    k(f"v_add_f32 v{a}, v{a}, v{t}")

def ln_scalars(k, S, Q, t0, t1, n):
    k(f"v_mul_f32 v{S}, {fhex(1.0/n)}, v{S}")
    k(f"v_mul_f32 v{t0}, v{S}, v{S}")
    k(f"v_mov_b32 v{t1}, {fhex(1.0/n)}")
    k(f"v_fma_f32 v{Q}, v{Q}, v{t1}, -v{t0}")
    k(f"v_max_f32 v{Q}, 0, v{Q}")
    round2(k, S, Q)
    k(f"v_add_f32 v{Q}, {fhex(1e-5)}, v{Q}")
    round1(k, Q)
    k(f"v_sqrt_f32 v{Q}, v{Q}")
    k.nop(1)
    round1(k, Q)
```

```python
from gen_common import *

class VM:
    def __init__(self, k): self.k = k; self.q = []
    def issue(self, text, tag):
        self.k(text); self.q.append(tag)
    def wait(self, tags, emit_if_noop=False):
        if not isinstance(tags, (set, list, tuple)): tags = [tags]
        idx = -1
        for i, t in enumerate(self.q):
            if t in tags: idx = i
        if idx < 0:
            return
        n = len(self.q) - idx - 1
        self.k(f"s_waitcnt vmcnt({n})")
        self.q = self.q[idx+1:]
    def wait_all(self):
        self.k("s_waitcnt vmcnt(0)"); self.q = []

def tile_map_4x8(k, s_rb, s_cb, t):
    k(f"s_and_b32 s{t}, s2, 7")
    k(f"s_lshr_b32 s{s_rb}, s{t}, 1")
    k(f"s_lshl_b32 s{s_rb}, s{s_rb}, 2")
    k(f"s_lshr_b32 s{s_cb}, s2, 6")
    k(f"s_add_u32 s{s_rb}, s{s_rb}, s{s_cb}")
    k(f"s_and_b32 s{t}, s{t}, 1")
    k(f"s_lshl_b32 s{t}, s{t}, 3")
    k(f"s_bfe_u32 s{s_cb}, s2, 0x30003")
    k(f"s_add_u32 s{s_cb}, s{s_cb}, s{t}")

class Core64:
    R = 8
    def __init__(self, k, vm, nst, PD, rowstride, perm, acc, wf, ring, ringf="v",
                 v_lane16=1, v_tr=(2, 3), v_dma=(4, 5), s_act=60, s_w=61, s_m0=62, srd_act=24, srd_w=28, lds_base=0):
        self.__dict__.update(locals())
    def setup_tr(self, vl, t0, t1):
        k = self.k
        a = self.v_tr[0]
        k(f"v_and_b32 v{t0}, 15, v{vl}")
        k(f"v_lshrrev_b32 v{t1}, 2, v{t0}")
        k(f"v_lshlrev_b32 v{a}, 7, v{t1}")
        k(f"v_lshrrev_b32 v{t1}, 3, v{t0}")
        k(f"v_lshl_add_u32 v{a}, v{t1}, 6, v{a}")
        k(f"v_and_b32 v{t1}, 3, v{t0}")
        k(f"v_lshl_add_u32 v{a}, v{t1}, 3, v{a}")
        k(f"v_bfe_u32 v{t1}, v{vl}, 4, 1")
        k(f"v_lshl_add_u32 v{a}, v{t1}, 5, v{a}")
        k(f"v_lshrrev_b32 v{t1}, 5, v{vl}")
        k(f"v_lshl_add_u32 v{a}, v{t1}, {9 if self.perm else 10}, v{a}")
        if self.lds_base: k(f"v_add_u32 v{a}, {self.lds_base}, v{a}")
        k(f"v_xor_b32 v{self.v_tr[1]}, 64, v{a}")
    def setup_dma(self, vl, t0, t1, st):
        k = self.k
        a, b = self.v_dma
        k(f"v_lshrrev_b32 v{t0}, 3, v{vl}")
        k(f"s_mov_b32 s{st}, {self.rowstride}")
        k(f"v_mul_lo_u32 v{a}, v{t0}, s{st}")
        k(f"v_and_b32 v{t0}, 7, v{vl}")
        k(f"v_bfe_u32 v{t1}, v{vl}, 4, 1")
        k(f"v_lshlrev_b32 v{t1}, 2, v{t1}")
        k(f"v_xor_b32 v{t0}, v{t0}, v{t1}")
        k(f"v_lshl_add_u32 v{a}, v{t0}, 4, v{a}")
        k(f"v_add_u32 v{b}, {8*self.rowstride-1024}, v{a}")
    def issue_dma(self, s):
        k = self.k; vm = self.vm
        k(f"s_add_u32 m0, s{self.s_m0}, {(s % self.R)*8192}")
        k.nop(1)
        vm.issue(f"buffer_load_dwordx4 v{self.v_dma[0]}, {sr(self.srd_w,4)}, s{self.s_w} offen lds", ("w", s))
        vm.issue(f"buffer_load_dwordx4 v{self.v_dma[1]}, {sr(self.srd_w,4)}, s{self.s_w} offen offset:1024 lds", ("w", s))
        k(f"s_add_u32 s{self.s_w}, s{self.s_w}, {64*self.rowstride}")
    def act_reg(self, s, j): return self.ring + ((s % self.R)*4 + j)*4
    def issue_act(self, s, js=range(4), upd=True):
        k = self.k; vm = self.vm
        for j in js:
            vm.issue(f"buffer_load_dwordx4 {vr(self.act_reg(s,j),4,self.ringf)}, v{self.v_lane16}, {sr(self.srd_act,4)}, s{self.s_act} offen offset:{j*1024}", ("a", s))
        if upd: k(f"s_add_u32 s{self.s_act}, s{self.s_act}, 4096")
    def tr_reads(self, s, j):
        k = self.k
        for nb in range(2):
            for t in range(2):
                r = self.wf + (j & 1)*8 + nb*4 + t*2
                off = (s % self.R)*8192 + j*2048 + t*(1024 if self.perm else 512)
                k(f"ds_read_b64_tr_b16 {vr(r,2)}, v{self.v_tr[nb]} offset:{off}")
    def mfmas(self, s, j, first):
        k = self.k
        for nb in range(2):
            d = vr(self.acc + nb*16, 16)
            k(f"v_mfma_f32_32x32x16_bf16 {d}, {vr(self.wf+(j&1)*8+nb*4,4)}, {vr(self.act_reg(s,j),4,self.ringf)}, {'0' if first else d}")
    def prologue(self, dma=True, act=True):
        for s in range(self.PD):
            if dma: self.issue_dma(s)
            if act: self.issue_act(s)
    def first(self, dma=True):
        k = self.k
        self.vm.wait([("w", 0)])
        k("s_barrier")
        self.tr_reads(0, 0)
    def stage(self, s, dma=True, zero_init=False):
        k = self.k; vm = self.vm; n = self.nst
        vm.wait([("w", s+1), ("a", s)])
        if s + 1 < n: k("s_barrier")
        nxt = s + self.PD < n
        if nxt and dma: self.issue_dma(s + self.PD)
        for j in range(4):
            if j < 3: self.tr_reads(s, j+1)
            elif s + 1 < n: self.tr_reads(s+1, 0)
            last = (j == 3 and s + 1 >= n)
            k(f"s_waitcnt lgkmcnt({0 if last else 4})")
            self.mfmas(s, j, zero_init and s == 0 and j == 0)
            if nxt: self.issue_act(s + self.PD, [j], upd=(j == 3))
    def helper_stage(self, s):
        k = self.k; vm = self.vm; n = self.nst
        if s + 1 < n:
            vm.wait([("w", s+1)])
            k("s_barrier")
        if s + self.PD < n: self.issue_dma(s + self.PD)

def emit_loop(k, vm, gen_iter, niter, s_cnt, name):
    texts = []
    for i in range(niter):
        save = k.lines; k.lines = []
        gen_iter(i)
        texts.append(k.lines); k.lines = save
    i = 0; li = 0
    while i < niter:
        j = i
        while j + 1 < niter and texts[j+1] == texts[i]: j += 1
        cnt = j - i + 1
        if cnt == 1:
            k.lines += texts[i]
        else:
            lab = k.L(f"{name}{li}"); li += 1
            k(f"s_mov_b32 s{s_cnt}, {cnt}")
            k.label(lab)
            k.lines += texts[i]
            k(f"s_sub_u32 s{s_cnt}, s{s_cnt}, 1")
            k(f"s_cmp_lg_u32 s{s_cnt}, 0")
            k(f"s_cbranch_scc1 {lab}")
        i = j + 1
```

```python
from gen_common import *

def gemv_tail(k, nvec, acc, vtid, s_out, s_off, vec_stride, lab):
    k(f"v_lshlrev_b32 v2, 5, v{vtid}")
    for vi in range(nvec):
        k(f"ds_write_b128 v2, {vr(acc[vi],4)} offset:{vi*8192}")
        k(f"ds_write_b128 v2, {vr(acc[vi]+4,4)} offset:{vi*8192+16}")
    k("s_waitcnt lgkmcnt(0)")
    k("s_barrier")
    k(f"s_cmp_ge_u32 s20, {nvec}")
    k(f"s_cbranch_scc1 {lab}")
    k(f"v_and_b32 v3, 63, v{vtid}")
    k("v_lshlrev_b32 v3, 2, v3")
    k("s_lshl_b32 s21, s20, 13")
    k("v_add_u32 v2, s21, v3")
    for g in range(32):
        k(f"ds_read_b32 v{16+g}, v2 offset:{g*256}")
        if g == 14: pass
    k("s_waitcnt lgkmcnt(0)")
    for st in (16, 8, 4, 2, 1):
        for g in range(st):
            k(f"v_add_f32 v{16+g}, v{16+g}, v{16+g+st}")
    k(f"s_mul_i32 s21, s20, {vec_stride}")
    k(f"s_add_u32 s21, s21, s{s_off}")
    k(f"buffer_store_dword v16, v3, {sr(s_out,4)}, s21 offen")
    k("s_waitcnt vmcnt(0)")

def gemv_fma(k, nvec, acc, mul, wreg, i, t):
    for j in range(4):
        unpack2(k, t, t+1, wreg+j)
        for vi in range(nvec):
            if i == 0:
                k(f"v_mul_f32 v{acc[vi]+2*j}, v{t}, v{mul[vi]+i}")
                k(f"v_mul_f32 v{acc[vi]+2*j+1}, v{t+1}, v{mul[vi]+i}")
            else:
                k(f"v_fmac_f32 v{acc[vi]+2*j}, v{t}, v{mul[vi]+i}")
                k(f"v_fmac_f32 v{acc[vi]+2*j+1}, v{t+1}, v{mul[vi]+i}")
        t ^= 2

def k1_mod():
    k = Kern("k1_kernel", vgpr=80, sgpr=40)
    done = k.L("done")
    k(f"s_cmp_ge_u32 s2, 384")
    k(f"s_cbranch_scc1 {done}")
    k(f"s_load_dwordx4 s[4:7], s[0:1], {KA_C}")
    k(f"s_load_dwordx2 s[8:9], s[0:1], {KA_WS}")
    k("v_lshrrev_b32 v1, 6, v0")
    k("v_and_b32 v4, 63, v0")
    k("v_readfirstlane_b32 s20, v1")
    k("s_and_b32 s22, s2, 3")
    k("s_lshr_b32 s23, s2, 2")
    k("v_lshrrev_b32 v5, 3, v4")
    k("v_and_b32 v6, 7, v4")
    k("s_lshl_b32 s24, s22, 8")
    k("s_lshl_b32 s25, s20, 6")
    k("s_add_u32 s24, s24, s25")
    k("v_lshlrev_b32 v7, 4, v5")
    k("s_mov_b32 s26, 98304")
    k("v_mul_lo_u32 v8, v5, s26")
    k("v_lshl_add_u32 v8, v6, 4, v8")
    k("s_waitcnt lgkmcnt(0)")
    srd(k, 12, 4, 2048)
    srd(k, 16, 6, 1024*6144*2)
    srd(k, 28, 8, SZ_MODP, WS_MODP)
    k("s_lshl_b32 s25, s24, 1")
    k("buffer_load_dwordx4 v[10:13], v7, s[12:15], s25 offen")
    k("s_mul_i32 s25, s24, 12288")
    k("s_lshl_b32 s26, s23, 7")
    k("s_add_u32 s25, s25, s26")
    for i in range(8):
        k(f"buffer_load_dwordx4 {vr(32+4*i,4)}, v8, s[16:19], s25 offen")
        if i < 7: k("s_add_u32 s25, s25, 12288")
    k("s_waitcnt vmcnt(8)")
    for j in range(4): unpack2(k, 16+2*j, 17+2*j, 10+j)
    for j in range(8): k(f"v_mul_f32 v{24+j}, {fhex(-LOG2E)}, v{16+j}")
    for j in range(8): k(f"v_exp_f32 v{24+j}, v{24+j}")
    for j in range(8): k(f"v_add_f32 v{24+j}, 1.0, v{24+j}")
    for j in range(8): k(f"v_rcp_f32 v{24+j}, v{24+j}")
    for j in range(8): k(f"v_mul_f32 v{16+j}, v{16+j}, v{24+j}")
    for j in range(4): round2(k, 16+2*j, 17+2*j)
    for i in range(8):
        k(f"s_waitcnt vmcnt({7-i})")
        gemv_fma(k, 1, [64], [16], 32+4*i, i, 24)
    k("s_mul_i32 s24, s22, 24576")
    k("s_lshl_b32 s25, s23, 8")
    k("s_add_u32 s24, s24, s25")
    gemv_tail(k, 1, [64], 0, 28, 24, 0, done)
    k.label(done)
    k("s_endpgm")
    return k, dict(grid=384, block=256, lds=8192)

def k2_front(emu_ln=False):
    k = Kern("k2_kernel", vgpr=128, sgpr=48)
    done = k.L("done"); ut = k.L("ut")
    k("s_cmp_ge_u32 s2, 480")
    k(f"s_cbranch_scc1 {done}")
    k(f"s_load_dwordx2 s[4:5], s[0:1], {KA_X}")
    k(f"s_load_dwordx4 s[8:11], s[0:1], {KA_WK}")
    k(f"s_load_dwordx2 s[6:7], s[0:1], {KA_W1}")
    k(f"s_load_dwordx2 s[12:13], s[0:1], {KA_WS}")
    k("v_lshrrev_b32 v1, 6, v0")
    k("v_and_b32 v4, 63, v0")
    k("v_readfirstlane_b32 s20, v1")
    k("s_cmp_ge_u32 s2, 256")
    k(f"s_cbranch_scc1 {ut}")
    LDS_MOD = 65536; LDS_ST = 65536 + 8192
    k("s_and_b32 s22, s2, 7")
    k("s_lshr_b32 s23, s2, 4")
    k("s_lshl_b32 s23, s23, 3")
    k("s_add_u32 s22, s22, s23")
    k("s_bfe_u32 s23, s2, 0x10003")
    k("v_and_b32 v5, 15, v4")
    k("v_lshrrev_b32 v6, 4, v4")
    k("v_lshlrev_b32 v7, 11, v5")
    k("v_lshl_add_u32 v7, v6, 4, v7")
    k("v_lshlrev_b32 v8, 4, v4")
    k("s_waitcnt lgkmcnt(0)")
    srd(k, 24, 4, SZ_ACT)
    k("s_cmp_eq_u32 s23, 0")
    k("s_cselect_b32 s8, s8, s10")
    k("s_cselect_b32 s9, s9, s11")
    srd(k, 28, 8, 65536)
    srd(k, 32, 12, SZ_MODP, WS_MODP)
    srd(k, 36, 12, SZ_ACT, WS_H1F)
    srd(k, 40, 12, SZ_KV, WS_KV)
    k("s_lshl_b32 s14, s22, 15")
    k("s_lshl_b32 s15, s20, 9")
    k("s_add_u32 s14, s14, s15")
    XR = 96
    for s in range(8):
        k(f"buffer_load_dwordx4 {vr(XR+4*s,4)}, v7, s[24:27], s14 offen offset:{s*64}")
    k("s_lshl_b32 s15, s20, 10")
    MR = 16
    for sp in range(4):
        for vec in range(2):
            k(f"s_add_u32 s14, s15, {sp*24576 + vec*4096}")
            k(f"buffer_load_dwordx4 {vr(MR+(sp*2+vec)*4,4)}, v8, s[32:35], s14 offen")
    k("s_lshl_b32 s15, s20, 14")
    for i4 in range(4):
        k(f"s_add_u32 s14, s15, {i4*4096}")
        k("s_mov_b32 m0, s14")
        k.nop(1)
        for i in range(4):
            k(f"buffer_load_dwordx4 v8, s[28:31], s14 offen offset:{i*1024} lds")
    k("s_waitcnt vmcnt(16)")
    for vec in range(2):
        for j in range(4):
            a = MR + vec*4 + j
            k(f"v_add_f32 v{a}, v{a}, v{a+8}")
            k(f"v_add_f32 v{a+16}, v{a+16}, v{a+24}")
            k(f"v_add_f32 v{a}, v{a}, v{a+16}")
    for j in range(0, 8, 2): round2(k, MR+j, MR+j+1)
    for j in range(4): k(f"v_add_f32 v{MR+4+j}, 1.0, v{MR+4+j}")
    round2(k, MR+4, MR+5); round2(k, MR+6, MR+7)
    k("s_lshl_b32 s15, s20, 11")
    k(f"s_add_u32 s15, s15, {LDS_MOD}")
    k("v_add_u32 v9, s15, v8")
    k(f"ds_write_b128 v9, {vr(MR,4)}")
    k(f"ds_write_b128 v9, {vr(MR+4,4)} offset:1024")
    XF = 32
    for d in range(32): unpack2(k, XF+2*d, XF+2*d+1, XR+d)
    for c in range(4):
        k(f"v_add_f32 v{16+c}, v{XF+c}, v{XF+4+c}")
        k(f"v_mul_f32 v{20+c}, v{XF+c}, v{XF+c}")
        k(f"v_fmac_f32 v{20+c}, v{XF+4+c}, v{XF+4+c}")
    for e in range(8, 64):
        k(f"v_add_f32 v{16+e%4}, v{16+e%4}, v{XF+e}")
        k(f"v_fmac_f32 v{20+e%4}, v{XF+e}, v{XF+e}")
    for b in (16, 20):
        k(f"v_add_f32 v{b}, v{b}, v{b+1}")
        k(f"v_add_f32 v{b+2}, v{b+2}, v{b+3}")
        k(f"v_add_f32 v{b}, v{b}, v{b+2}")
    k("v_mov_b32 v17, v20")
    for r in (16, 17):
        sum_rows16(k, r, 18)
        sum_halves(k, r, 18)
    k("s_lshl_b32 s15, s20, 7")
    k(f"s_add_u32 s15, s15, {LDS_ST}")
    k("v_lshlrev_b32 v10, 3, v5")
    k("v_add_u32 v11, s15, v10")
    k("ds_write_b64 v11, v[16:17]")
    k("s_waitcnt lgkmcnt(0)")
    k("s_barrier")
    k(f"v_add_u32 v10, {LDS_ST}, v10")
    for w in range(4): k(f"ds_read_b64 {vr(16+2*w,2)}, v10 offset:{w*128}")
    k("s_lshl_b32 s15, s20, 11")
    k(f"s_add_u32 s15, s15, {LDS_MOD}")
    k("v_lshl_add_u32 v9, v6, 5, s15")
    k("s_waitcnt lgkmcnt(0)")
    for c in range(2):
        k(f"v_add_f32 v{16+c}, v{16+c}, v{18+c}")
        k(f"v_add_f32 v{20+c}, v{20+c}, v{22+c}")
        k(f"v_add_f32 v{16+c}, v{16+c}, v{20+c}")
    ln_scalars(k, 16, 17, 18, 19, 1024)
    k("v_rcp_f32 v17, v17")
    k.nop(1)
    k("v_mul_f32 v12, v16, v17")
    k("v_mov_b32 v13, v17")
    k("v_mov_b32 v14, v16")
    for s in range(8):
        k(f"ds_read_b128 v[16:19], v9 offset:{s*128}")
        k(f"ds_read_b128 v[20:23], v9 offset:{s*128+16}")
        k(f"ds_read_b128 v[24:27], v9 offset:{1024+s*128}")
        k(f"ds_read_b128 v[28:31], v9 offset:{1024+s*128+16}")
        x0 = XF + 8*s
        if emu_ln:
            for e in range(8): k(f"v_sub_f32 v{x0+e}, v{x0+e}, v14")
            for e in range(0, 8, 2): round2(k, x0+e, x0+e+1)
            for e in range(8): k(f"v_mul_f32 v{x0+e}, v{x0+e}, v13")
            for e in range(0, 8, 2): round2(k, x0+e, x0+e+1)
            k("s_waitcnt lgkmcnt(0)")
            for e in range(8): k(f"v_mul_f32 v{x0+e}, v{x0+e}, v{24+e}")
            for e in range(0, 8, 2): round2(k, x0+e, x0+e+1)
            for e in range(8): k(f"v_add_f32 v{x0+e}, v{x0+e}, v{16+e}")
        else:
            for e in range(8): k(f"v_fma_f32 v{x0+e}, v{x0+e}, v13, -v12")
            k("s_waitcnt lgkmcnt(0)")
            for e in range(8): k(f"v_fma_f32 v{x0+e}, v{x0+e}, v{24+e}, v{16+e}")
        for e in range(4): k(f"v_cvt_pk_bf16_f32 v{XR+4*s+e}, v{x0+2*e}, v{x0+2*e+1}")
    k("v_lshrrev_b32 v10, 1, v6")
    k("v_lshlrev_b32 v10, 10, v10")
    k("v_and_b32 v11, 1, v6")
    k("v_lshl_add_u32 v10, v11, 9, v10")
    k("v_lshl_add_u32 v10, v5, 4, v10")
    k("s_lshr_b32 s14, s22, 1")
    k("s_lshl_b32 s14, s14, 16")
    k("s_and_b32 s15, s22, 1")
    k("s_lshl_b32 s15, s15, 8")
    k("s_add_u32 s14, s14, s15")
    k("s_lshl_b32 s15, s20, 14")
    k("s_add_u32 s14, s14, s15")
    k("v_lshrrev_b32 v11, 2, v5")
    k("v_lshl_add_u32 v11, v6, 3, v11")
    k("v_lshlrev_b32 v11, 6, v11")
    k("v_and_b32 v15, 3, v5")
    k("v_lshl_add_u32 v11, v15, 3, v11")
    k("v_add_u32 v11, s15, v11")
    k("s_waitcnt vmcnt(0)")
    lv = k.L("selv"); lj = k.L("seljoin")
    WF = 32
    for s in range(8):
        for nt in range(2):
            for t in range(2):
                r = WF + (s*2+nt)*4 + 2*t
                k(f"ds_read_b64_tr_b16 {vr(r,2)}, v11 offset:{s*2048+t*256+nt*32}")
    k("s_cmp_lg_u32 s23, 0")
    k(f"s_cbranch_scc1 {lv}")
    for sel in range(2):
        if sel == 1: k.label(lv)
        for s in range(4):
            ss = 4*sel + s
            k(f"s_add_u32 s16, s14, {ss*2048}")
            k(f"buffer_store_dwordx4 {vr(XR+4*ss,4)}, v10, s[36:39], s16 offen")
        k("s_waitcnt lgkmcnt(0)")
        for s in range(8):
            for nt in range(2):
                w_ = vr(WF+(s*2+nt)*4, 4); h_ = vr(XR+4*s, 4)
                a, b = (w_, h_) if sel == 0 else (h_, w_)
                k(f"v_mfma_f32_16x16x32_bf16 {vr(16+4*nt,4)}, {a}, {b}, {'0' if s == 0 else vr(16+4*nt,4)}")
        if sel == 0: k(f"s_branch {lj}")
    k.label(lj)
    k("v_add_u32 v9, s15, v8")
    k.nop(8)
    k("ds_write_b128 v9, v[16:19]")
    k("ds_write_b128 v9, v[20:23] offset:1024")
    k("s_waitcnt lgkmcnt(0)")
    k("s_barrier")
    k("s_cmp_ge_u32 s20, 2")
    k(f"s_cbranch_scc1 {done}")
    k("s_lshl_b32 s15, s20, 10")
    k("v_add_u32 v9, s15, v8")
    for w in range(4): k(f"ds_read_b128 {vr(16+4*w,4)}, v9 offset:{w*16384}")
    k("v_and_b32 v11, 1, v6")
    k("v_lshlrev_b32 v10, 9, v11")
    k("v_lshl_add_u32 v10, v5, 4, v10")
    k("v_lshrrev_b32 v11, 1, v6")
    k("v_lshl_add_u32 v10, v11, 3, v10")
    k("s_lshr_b32 s14, s22, 1")
    k("s_lshl_b32 s14, s14, 12")
    k("s_and_b32 s16, s22, 1")
    k("s_lshl_b32 s17, s16, 8")
    k("s_add_u32 s17, s17, s15")
    k("s_lshl_b32 s18, s16, 10")
    k("s_lshl_b32 s19, s20, 8")
    k("s_add_u32 s18, s18, s19")
    k("s_add_u32 s18, s18, 2048")
    k("s_cmp_eq_u32 s23, 0")
    k("s_cselect_b32 s17, s17, s18")
    k("s_add_u32 s14, s14, s17")
    k("s_waitcnt lgkmcnt(0)")
    for j in range(4):
        k(f"v_add_f32 v{16+j}, v{16+j}, v{20+j}")
        k(f"v_add_f32 v{24+j}, v{24+j}, v{28+j}")
        k(f"v_add_f32 v{16+j}, v{16+j}, v{24+j}")
    k("v_cvt_pk_bf16_f32 v16, v16, v17")
    k("v_cvt_pk_bf16_f32 v17, v18, v19")
    k("buffer_store_dwordx2 v[16:17], v10, s[40:43], s14 offen")
    k("s_endpgm")
    k.label(ut)
    k("s_sub_u32 s21, s2, 256")
    k("s_and_b32 s22, s21, 3")
    k("s_lshr_b32 s23, s21, 2")
    k("v_lshrrev_b32 v5, 3, v4")
    k("v_and_b32 v6, 7, v4")
    k("s_lshl_b32 s24, s22, 8")
    k("s_lshl_b32 s25, s20, 6")
    k("s_add_u32 s24, s24, s25")
    k("v_lshlrev_b32 v7, 5, v5")
    k("s_mov_b32 s26, 57344")
    k("v_mul_lo_u32 v8, v5, s26")
    k("v_lshl_add_u32 v8, v6, 4, v8")
    k("s_waitcnt lgkmcnt(0)")
    srd(k, 16, 6, 1024*3584*2)
    srd(k, 32, 12, SZ_MODP, WS_MODP)
    srd(k, 28, 12, SZ_UTP, WS_UTP)
    k("s_lshl_b32 s25, s24, 2")
    for sp in range(4):
        for vec, col in ((0, 4096), (1, 3072)):
            k(f"s_add_u32 s26, s25, {sp*24576 + col*4}")
            r = 64 + (sp*2+vec)*8
            k(f"buffer_load_dwordx4 {vr(r,4)}, v7, s[32:35], s26 offen")
            k(f"buffer_load_dwordx4 {vr(r+4,4)}, v7, s[32:35], s26 offen offset:16")
    k("s_mul_i32 s25, s24, 7168")
    k("s_lshl_b32 s26, s23, 7")
    k("s_add_u32 s25, s25, s26")
    for i in range(8):
        k(f"buffer_load_dwordx4 {vr(32+4*i,4)}, v8, s[16:19], s25 offen")
        if i < 7: k("s_add_u32 s25, s25, 7168")
    k("s_waitcnt vmcnt(8)")
    for j in range(16):
        k(f"v_add_f32 v{64+j}, v{64+j}, v{80+j}")
        k(f"v_add_f32 v{96+j}, v{96+j}, v{112+j}")
        k(f"v_add_f32 v{64+j}, v{64+j}, v{96+j}")
    for j in range(0, 16, 2): round2(k, 64+j, 65+j)
    for j in range(8): k(f"v_add_f32 v{64+j}, 1.0, v{64+j}")
    for j in range(0, 8, 2): round2(k, 64+j, 65+j)
    for i in range(8):
        k(f"s_waitcnt vmcnt({7-i})")
        gemv_fma(k, 2, [80, 88], [64, 72], 32+4*i, i, 24)
    k(f"s_mul_i32 s24, s22, {2*3584*4}")
    k("s_lshl_b32 s25, s23, 8")
    k("s_add_u32 s24, s24, s25")
    gemv_tail(k, 2, [80, 88], 0, 28, 24, 3584*4, done)
    k.label(done)
    k("s_endpgm")
    return k, dict(grid=480, block=256, lds=65536+8192+512)
```

```python
from gen_core import *

def common64(k, ka_w):
    k(f"s_load_dwordx2 s[4:5], s[0:1], {ka_w}")
    k(f"s_load_dwordx2 s[6:7], s[0:1], {KA_WS}")
    k("v_lshrrev_b32 v6, 6, v0")
    k("v_and_b32 v7, 63, v0")
    k("v_readfirstlane_b32 s20, v6")
    k("v_lshlrev_b32 v1, 4, v7")
    tile_map_4x8(k, 21, 22, 23)
    k("s_lshl_b32 s19, s21, 2")
    k("s_add_u32 s19, s19, s20")
    k("s_lshl_b32 s61, s22, 7")
    k("s_lshl_b32 s62, s20, 15")
    k("s_add_u32 s61, s61, s62")
    k("s_lshl_b32 s62, s20, 11")
    k("v_and_b32 v10, 31, v7")
    k("v_lshrrev_b32 v11, 5, v7")
    k("v_lshlrev_b32 v12, 4, v11")

def k4_wo(opts):
    k = Kern("k4_kernel", vgpr=208, sgpr=72)
    vm = VM(k); done = k.L("done")
    rnd = opts.get("round_all", 0)
    k("s_cmp_ge_u32 s2, 256")
    k(f"s_cbranch_scc1 {done}")
    k(f"s_load_dwordx2 s[8:9], s[0:1], {KA_X}")
    common64(k, KA_WO)
    core = Core64(k, vm, 16, 7, 2048, True, acc=16, wf=48, ring=64)
    core.setup_dma(7, 8, 9, 23)
    k("s_lshl_b32 s60, s19, 16")
    k("s_waitcnt lgkmcnt(0)")
    srd(k, 24, 6, SZ_ACT, WS_OF)
    srd(k, 28, 4, 1024*1024*2)
    core.prologue()
    core.setup_tr(7, 8, 9)
    srd(k, 32, 8, SZ_ACT)
    srd(k, 36, 6, SZ_MODF, WS_MODF)
    srd(k, 40, 6, SZ_ACT, WS_X2P)
    srd(k, 44, 6, SZ_ACT, WS_X2SF)
    srd(k, 48, 6, SZ_STATS, WS_STATS)
    k("v_lshlrev_b32 v13, 11, v10")
    k("v_lshl_add_u32 v13, v11, 3, v13")
    k("s_lshl_b32 s56, s19, 16")
    k("s_lshl_b32 s57, s22, 7")
    k("s_add_u32 s56, s56, s57")
    k("s_lshl_b32 s57, s22, 8")
    k("s_add_u32 s58, s57, 4096")
    core.first()
    XG, GA, G2 = 192, 64, 96
    for s in range(16):
        if s == 12:
            for nb in range(2):
                for a in range(4):
                    i = nb*4 + a
                    vm.issue(f"buffer_load_dwordx2 {vr(XG+2*i,2)}, v13, s[32:35], s56 offen offset:{64*nb+16*a}", "e")
                    vm.issue(f"buffer_load_dwordx4 {vr(GA+4*i,4)}, v12, s[36:39], s57 offen offset:{128*nb+32*a}", "e")
                    vm.issue(f"buffer_load_dwordx4 {vr(G2+4*i,4)}, v12, s[36:39], s58 offen offset:{128*nb+32*a}", "e")
        core.stage(s, zero_init=True)
    k("s_lshl_b32 s56, s19, 16")
    k("s_lshl_b32 s57, s22, 12")
    k("s_add_u32 s56, s56, s57")
    k("v_mov_b32 v8, 0")
    k("v_mov_b32 v9, 0")
    vm.wait("e")
    k.nop(8)
    PX, PS = 128, 144
    for i in range(16):
        a0 = 16 + 2*i
        unpack2(k, 2, 3, XG+i)
        if rnd:
            round2(k, a0, a0+1)
            k(f"v_mul_f32 v{a0}, v{a0}, v{GA+2*i}")
            k(f"v_mul_f32 v{a0+1}, v{a0+1}, v{GA+2*i+1}")
            round2(k, a0, a0+1)
            k(f"v_add_f32 v2, v2, v{a0}")
            k(f"v_add_f32 v3, v3, v{a0+1}")
        else:
            k(f"v_fmac_f32 v2, v{a0}, v{GA+2*i}")
            k(f"v_fmac_f32 v3, v{a0+1}, v{GA+2*i+1}")
        k(f"v_cvt_pk_bf16_f32 v{PX+i}, v2, v3")
        unpack2(k, 2, 3, PX+i)
        k("v_add_f32 v8, v8, v2")
        k("v_fmac_f32 v9, v2, v2")
        k("v_add_f32 v8, v8, v3")
        k("v_fmac_f32 v9, v3, v3")
        k(f"v_mul_f32 v2, v2, v{G2+2*i}")
        k(f"v_mul_f32 v3, v3, v{G2+2*i+1}")
        k(f"v_cvt_pk_bf16_f32 v{PS+i}, v2, v3")
        if i % 4 == 3:
            f = i // 4
            k(f"buffer_store_dwordx4 {vr(PS+4*f,4)}, v1, s[44:47], s56 offen offset:{f*1024}")
            k(f"buffer_store_dwordx4 {vr(PX+4*f,4)}, v1, s[40:43], s56 offen offset:{f*1024}")
    sum_halves(k, 8, 2)
    sum_halves(k, 9, 3)
    k("v_lshlrev_b32 v13, 7, v10")
    k("s_lshl_b32 s56, s19, 12")
    k("s_lshl_b32 s57, s22, 3")
    k("s_add_u32 s56, s56, s57")
    k("s_mov_b32 exec_hi, 0")
    k("buffer_store_dwordx2 v[8:9], v13, s[48:51], s56 offen")
    k.label(done)
    k("s_endpgm")
    return k, dict(grid=256, block=256, lds=65536)

def k6_ffn2(opts):
    k = Kern("k6_kernel", vgpr=212, sgpr=72)
    vm = VM(k); done = k.L("done")
    rnd = opts.get("round_all", 0)
    k("s_cmp_ge_u32 s2, 256")
    k(f"s_cbranch_scc1 {done}")
    k(f"s_load_dwordx2 s[8:9], s[0:1], {KA_OUT}")
    common64(k, KA_W2)
    core = Core64(k, vm, 56, 7, 2048, True, acc=16, wf=48, ring=64)
    core.setup_dma(7, 8, 9, 23)
    k(f"s_mul_i32 s60, s19, {224*1024}")
    k("s_waitcnt lgkmcnt(0)")
    srd(k, 24, 6, SZ_HF, WS_HF)
    srd(k, 28, 4, 3584*1024*2)
    core.prologue()
    core.setup_tr(7, 8, 9)
    srd(k, 32, 8, SZ_ACT)
    srd(k, 36, 6, SZ_MODF, WS_MODF)
    srd(k, 40, 6, SZ_ACT, WS_X2P)
    srd(k, 44, 6, SZ_RSTD, WS_RSTD)
    k("s_lshl_b32 s56, s19, 16")
    k("s_lshl_b32 s57, s22, 12")
    k("s_add_u32 s56, s56, s57")
    k("s_lshl_b32 s57, s22, 8")
    k("s_add_u32 s57, s57, 8192")
    k("s_lshl_b32 s58, s19, 7")
    k("v_lshlrev_b32 v14, 2, v10")
    for r in range(32): k(f"v_mov_b32 v{16+r}, 0")
    core.first()
    XG, GB, RS = 192, 64, 208
    def it(i):
        for s in range(8*i, 8*i+8):
            if s == 52:
                for f in range(4):
                    vm.issue(f"buffer_load_dwordx4 {vr(XG+4*f,4)}, v1, s[40:43], s56 offen offset:{f*1024}", "e")
                for nb in range(2):
                    for a in range(4):
                        vm.issue(f"buffer_load_dwordx4 {vr(GB+4*(nb*4+a),4)}, v12, s[36:39], s57 offen offset:{128*nb+32*a}", "e")
                vm.issue(f"buffer_load_dword v{RS}, v14, s[44:47], s58 offen", "e")
            core.stage(s)
    emit_loop(k, vm, it, 7, 65, "k")
    k("v_lshlrev_b32 v13, 11, v10")
    k("v_add_u32 v13, v13, v12")
    k("s_lshl_b32 s56, s19, 16")
    k("s_lshl_b32 s57, s22, 7")
    k("s_add_u32 s56, s56, s57")
    vm.wait("e")
    k.nop(8)
    PX = 128
    for i in range(16):
        a0 = 16 + 2*i
        unpack2(k, 2, 3, XG+i)
        k(f"v_mul_f32 v{a0}, v{a0}, v{RS}")
        k(f"v_mul_f32 v{a0+1}, v{a0+1}, v{RS}")
        if rnd:
            round2(k, a0, a0+1)
            k(f"v_mul_f32 v{a0}, v{a0}, v{GB+2*i}")
            k(f"v_mul_f32 v{a0+1}, v{a0+1}, v{GB+2*i+1}")
            round2(k, a0, a0+1)
            k(f"v_add_f32 v2, v2, v{a0}")
            k(f"v_add_f32 v3, v3, v{a0+1}")
        else:
            k(f"v_fmac_f32 v2, v{a0}, v{GB+2*i}")
            k(f"v_fmac_f32 v3, v{a0+1}, v{GB+2*i+1}")
        k(f"v_cvt_pk_bf16_f32 v{PX+i}, v2, v3")
        if i % 4 == 3:
            f = i // 4; b = PX + 4*f
            k.nop(2)
            k(f"v_permlane32_swap_b32 v{b}, v{b+2}")
            k(f"v_permlane32_swap_b32 v{b+1}, v{b+3}")
            k(f"buffer_store_dwordx4 {vr(b,4)}, v13, s[32:35], s56 offen offset:{32*f}")
    k.label(done)
    k("s_endpgm")
    return k, dict(grid=256, block=256, lds=65536)

def k5_ffn1(opts):
    PD = opts.get("pd5", 7); R = 8
    k = Kern("k5_kernel", vgpr=208, agpr=128, sgpr=72)
    vm = VM(k); done = k.L("done")
    ACC, WF, BF, UF = 16, 144, 176, 184
    RS_ = 7168
    k("s_cmp_ge_u32 s2, 224")
    k(f"s_cbranch_scc1 {done}")
    k(f"s_load_dwordx2 s[4:5], s[0:1], {KA_W1}")
    k(f"s_load_dwordx2 s[6:7], s[0:1], {KA_WS}")
    k("v_lshrrev_b32 v6, 6, v0")
    k("v_and_b32 v7, 63, v0")
    k("v_readfirstlane_b32 s20, v6")
    k("v_lshlrev_b32 v1, 4, v7")
    k("s_lshr_b32 s23, s2, 3")
    k("s_mul_i32 s21, s23, 37")
    k("s_lshr_b32 s21, s21, 8")
    k("s_mul_i32 s22, s21, 7")
    k("s_sub_u32 s22, s23, s22")
    k("s_bfe_u32 s23, s2, 0x10002")
    k("s_lshl_b32 s23, s23, 2")
    k("s_add_u32 s21, s21, s23")
    k("s_and_b32 s23, s2, 3")
    k("s_mul_i32 s23, s23, 7")
    k("s_add_u32 s22, s22, s23")
    k("s_lshl_b32 s19, s21, 3")
    k("s_lshl_b32 s23, s20, 1")
    k("s_add_u32 s19, s19, s23")
    k("v_and_b32 v10, 31, v7")
    k("v_lshrrev_b32 v11, 5, v7")
    k("v_lshrrev_b32 v8, 4, v7")
    k(f"s_mov_b32 s23, {RS_}")
    k("v_mul_lo_u32 v4, v8, s23")
    k("v_lshlrev_b32 v8, 2, v8")
    k("v_and_b32 v9, 15, v7")
    k("v_xor_b32 v8, v8, v9")
    k("v_lshl_add_u32 v4, v8, 4, v4")
    k(f"v_add_u32 v5, {4*RS_-1024}, v4")
    k("s_lshl_b32 s61, s22, 8")
    k(f"s_mul_i32 s62, s20, {8*RS_}")
    k("s_add_u32 s61, s61, s62")
    k("s_lshl_b32 s62, s20, 11")
    k("s_lshl_b32 s60, s19, 16")
    k("s_add_u32 s59, s60, 65536")
    k("v_lshlrev_b32 v12, 7, v10")
    k("v_lshl_add_u32 v12, v11, 6, v12")
    k("s_lshl_b32 s56, s19, 12")
    k("s_waitcnt lgkmcnt(0)")
    srd(k, 24, 6, SZ_ACT, WS_X2SF)
    srd(k, 28, 4, 1024*3584*2)
    srd(k, 32, 6, SZ_STATS, WS_STATS)
    srd(k, 36, 6, SZ_UTF, WS_UTF)
    srd(k, 40, 6, SZ_HF, WS_HF)
    srd(k, 44, 6, SZ_RSTD, WS_RSTD)
    for tt in range(2):
        for q in range(4):
            vm.issue(f"buffer_load_dwordx4 {vr(ACC+tt*16+q*4,4)}, v12, s[32:35], s56 offen offset:{q*16}", "st")
        if tt == 0: k("s_add_u32 s56, s56, 4096")
    k("v_lshlrev_b32 v13, 4, v10")
    k("v_lshl_add_u32 v13, v11, 30, v13")
    k("s_lshl_b32 s56, s22, 11")
    for nb in range(4):
        vm.issue(f"buffer_load_dwordx4 {vr(UF+4*nb,4)}, v13, s[36:39], s56 offen offset:{nb*512}", "uf")
    def issue_dma(s):
        k(f"s_add_u32 m0, s62, {(s % R)*8192}")
        k.nop(1)
        vm.issue("buffer_load_dwordx4 v4, s[28:31], s61 offen lds", ("w", s))
        vm.issue("buffer_load_dwordx4 v5, s[28:31], s61 offen offset:1024 lds", ("w", s))
        k(f"s_add_u32 s61, s61, {32*RS_}")
    def areg(s, j, tt): return ((s % R)*4 + j*2 + tt)*4
    def issue_act(s, j, tt):
        vm.issue(f"buffer_load_dwordx4 {ar(areg(s,j,tt),4)}, v1, s[24:27], s{60-tt} offen offset:{j*1024}", ("a", s))
        if j == 1: k(f"s_add_u32 s{60-tt}, s{60-tt}, 2048")
    for s in range(PD):
        issue_dma(s)
        for j in range(2):
            for tt in range(2): issue_act(s, j, tt)
    TR = [2, 3, 14, 15]
    k("v_and_b32 v8, 15, v7")
    k("v_lshrrev_b32 v9, 2, v8")
    k("v_lshlrev_b32 v2, 8, v9")
    k("v_lshl_add_u32 v2, v9, 6, v2")
    k("v_and_b32 v9, 3, v8")
    k("v_lshl_add_u32 v2, v9, 3, v2")
    k("v_bfe_u32 v9, v7, 4, 1")
    k("v_lshl_add_u32 v2, v9, 5, v2")
    k("v_lshl_add_u32 v2, v11, 10, v2")
    for nb in range(1, 4): k(f"v_xor_b32 v{TR[nb]}, {64*nb}, v2")
    vm.wait("st")
    for tt in range(2):
        b = ACC + tt*16
        for st in (8, 4, 2):
            for e in range(st): k(f"v_add_f32 v{b+e}, v{b+e}, v{b+e+st}")
        sum_halves(k, b, 8)
        sum_halves(k, b+1, 8)
        ln_scalars(k, b, b+1, 8, 9, 1024)
        k(f"v_sub_f32 v{b}, 0, v{b}")
        k(f"v_cvt_pk_bf16_f32 v{BF+4*tt}, v{b}, v{b}")
        k(f"v_cvt_pk_bf16_f32 v{BF+4*tt+1}, v{b+1}, v{b+1}")
        k(f"v_mov_b32 v{BF+4*tt+2}, 0")
        k(f"v_mov_b32 v{BF+4*tt+3}, 0")
        k(f"v_rcp_f32 v{b+2}, v{b+1}")
    k("s_cmp_eq_u32 s22, 0")
    k("s_cselect_b32 s56, 0, 0x40000000")
    k("v_lshlrev_b32 v8, 2, v10")
    k("v_add_u32 v8, s56, v8")
    k("s_lshl_b32 s56, s19, 7")
    vm.issue(f"buffer_store_dword v{ACC+2}, v8, s[44:47], s56 offen", "rs")
    vm.issue(f"buffer_store_dword v{ACC+18}, v8, s[44:47], s56 offen offset:128", "rs")
    def tr(s, j, nb, t):
        r = WF + (j & 1)*16 + nb*4 + t*2
        k(f"ds_read_b64_tr_b16 {vr(r,2)}, v{TR[nb]} offset:{(s % R)*8192 + j*4096 + t*2048}")
    vm.wait([("w", 0)])
    k("s_barrier")
    for nb in range(4):
        for t in range(2): tr(0, 0, nb, t)
    NST = 32
    def stage(s):
        vm.wait([("w", s+1), ("a", s)])
        if s + 1 < NST: k("s_barrier")
        nxt = s + PD < NST
        for j in range(2):
            more = (j == 0) or (s + 1 < NST)
            ns, nj = (s, 1) if j == 0 else (s+1, 0)
            for nb in range(4):
                k(f"s_waitcnt lgkmcnt({6 if more else 6-2*nb})")
                for tt in range(2):
                    d = vr(ACC + (tt*4+nb)*16, 16)
                    k(f"v_mfma_f32_32x32x16_bf16 {d}, {vr(WF+(j&1)*16+nb*4,4)}, {ar(areg(s,j,tt),4)}, {'0' if (s == 0 and j == 0) else d}")
                    if more: tr(ns, nj, nb, tt)
                if nxt:
                    if j == 0 and nb == 0: issue_dma(s + PD)
                    if nb >= 2: issue_act(s + PD, j, nb - 2)
    emit_loop(k, vm, lambda i: [stage(8*i + s) for s in range(8)], 4, 65, "k")
    vm.wait("uf")
    for nb in range(4):
        for tt in range(2):
            d = vr(ACC + (tt*4+nb)*16, 16)
            k(f"v_mfma_f32_32x32x16_bf16 {d}, {vr(UF+4*nb,4)}, {vr(BF+4*tt,4)}, {d}")
    k(f"s_mul_i32 s56, s19, {224*1024}")
    k("s_lshl_b32 s57, s22, 13")
    k("s_add_u32 s56, s56, s57")
    k.nop(6)
    for nb in range(4):
        for tt in range(2):
            b = ACC + (tt*4+nb)*16
            for i in range(8): k(f"v_cvt_pk_bf16_f32 v{b+i}, v{b+2*i}, v{b+2*i+1}")
            for i in range(8): k(f"v_pk_max_i16 v{b+i}, v{b+i}, 0")
            k(f"s_add_u32 s57, s56, {tt*224*1024 + nb*2048}")
            k(f"buffer_store_dwordx4 {vr(b,4)}, v1, s[40:43], s57 offen")
            k(f"buffer_store_dwordx4 {vr(b+4,4)}, v1, s[40:43], s57 offen offset:1024")
    k.label(done)
    k("s_endpgm")
    return k, dict(grid=224, block=256, lds=65536)
```

```python
import sys, importlib
sys.path.insert(0, "work")
from gen_common import *
import gen_front

HEADER = open("adaLN_cond__grouped_kv_mqa__dense_activation_relu__prompt.s.ref").read().split("; Override launch")[0]

def assemble(kerns):
    out = [HEADER.rstrip()]
    for k, L in kerns:
        out.append(f"; @launch kernel={k.name} grid=({L['grid']},1,1) block=({L['block']},1,1) lds={L['lds']}")
    out.append('.amdgcn_target "amdgcn-amd-amdhsa--gfx950"')
    out.append(".text")
    seen = []
    for k, L in kerns:
        if k.name in seen: continue
        seen.append(k.name); out.append(k.text())
    out.append('.section .rodata,"a"')
    seen = []
    for k, L in kerns:
        if k.name in seen: continue
        seen.append(k.name); out.append(k.desc())
    return "\n".join(out) + "\n"

def build_list(opts):
    ks = [gen_front.k1_mod(), gen_front.k2_front(emu_ln=opts.get("emu_ln", False))]
    upto = opts.get("upto", 6)
    if upto >= 3:
        import gen_attn; ks.append(gen_attn.k3_attn(opts))
    if upto >= 4:
        import gen_gemm; ks.append(gen_gemm.k4_wo(opts))
    if upto >= 5:
        import gen_gemm; ks.append(gen_gemm.k5_ffn1(opts))
    if upto >= 6:
        import gen_gemm; ks.append(gen_gemm.k6_ffn2(opts))
    return ks

if __name__ == "__main__":
    opts = {}
    outp = "out.s"
    for a in sys.argv[1:]:
        if "=" in a:
            kk, v = a.split("=", 1)
            if kk == "o": outp = v
            else: opts[kk] = int(v)
    ks = build_list(opts)
    bad = 0
    for k, L in ks:
        errs, n = check(k.lines, k.name)
        for e in errs: print(e)
        bad += len(errs)
        print(f"{k.name}: {len(k.lines)} lines, {n} paths, {len(errs)} issues")
    open(outp, "w").write(assemble(ks))
    print("wrote", outp)
```
